```python
import torch

def _softmax(x, axis=-1):
    return torch.softmax(x, dim=axis)
def _gelu(x):
    return torch.nn.functional.gelu(x, approximate="tanh")
def _silu(x):
    return torch.nn.functional.silu(x)
def _sigmoid(x):
    return torch.sigmoid(x)
def _layernorm(x, axis=-1, eps=1e-5):
    m = x.mean(dim=axis, keepdim=True)
    v = x.var(dim=axis, keepdim=True, unbiased=False)
    return (x - m) / torch.sqrt(v + eps)
def _scatter_add(tgt, idx, src, axis=0):
    return tgt.clone().index_add_(axis, idx, src)
def _segment_sum(src, seg, n):
    out = torch.zeros((n,) + src.shape[1:], dtype=src.dtype)
    return out.index_add_(0, seg, src)
def _pad(x, pw):
    flat = tuple(v for pair in reversed(pw) for v in pair)
    return torch.nn.functional.pad(x, flat)

kernel_name = 'standalone__gqa_block_cached__near_ridge'

def setup_inputs():

    _w = (lambda a: (lambda t: t.to(torch.bfloat16) if t.is_floating_point() else t)(torch.as_tensor(a)))
    B, Sq, D = 16, 32, 512
    Hq, Hkv, Sk, Dh = 32, 8, 512, 128
    assert Hq % Hkv == 0, (Hq, Hkv)
    return {
        "x": _w((lambda *s: torch.randn(*s, dtype=torch.bfloat16) * 0.8)(B, Sq, D)),
        "k_cache": _w((lambda *s: torch.randn(*s, dtype=torch.bfloat16) * 0.8)(B, Hkv, Sk, Dh)),
        "v_cache": _w((lambda *s: torch.randn(*s, dtype=torch.bfloat16) * 0.05)(B, Hkv, Sk, Dh)),
        "wq": _w((lambda *s: torch.randn(*s, dtype=torch.bfloat16) * 0.8)(D, Hq * Dh) * (D ** -0.5)),
        "wo": _w((lambda *s: torch.randn(*s, dtype=torch.bfloat16) * 0.05)(Hq * Dh, D) * ((Hq * Dh) ** -0.5)),
    }

def reference(x, k_cache, v_cache, wq, wo):
    B, Sq, D = x.shape
    Hq, Dh = 32, 128
    Hkv = k_cache.shape[1]
    rep = Hq // Hkv
    q = (lambda x, *d: x.permute(*d))((x @ wq).reshape(B, Sq, Hq, Dh), 0, 2, 1, 3)
    k = (lambda x, n, axis: torch.repeat_interleave(x, n, dim=axis))(k_cache, rep, axis=1)
    v = (lambda x, n, axis: torch.repeat_interleave(x, n, dim=axis))(v_cache, rep, axis=1)
    scores = torch.einsum("bhqd,bhkd->bhqk", q, k) * (Dh ** -0.5)
    p = _softmax(scores, axis=-1)
    o = torch.einsum("bhqk,bhkd->bhqd", p, v)
    return (lambda x, *d: x.permute(*d))(o, 0, 2, 1, 3).reshape(B, Sq, Hq * Dh) @ wo
```

```python
NAME = "standalone__gqa_block_cached__near_ridge_kernel"
WS_BYTES = 268435456
STAMP_OFF = WS_BYTES - (4 << 20)

class Asm:
    def __init__(self):
        self.lines = []
        self.nlab = 0
    def __call__(self, s):
        for l in s.split("\n"):
            l = l.strip()
            if l:
                self.lines.append(("    " + l) if not l.endswith(":") else l)
    def label(self, p="L"):
        self.nlab += 1
        return f"{p}_{self.nlab}"
    def text(self):
        return "\n".join(self.lines) + "\n"

def srd(a, d, b, nbytes):
    a(f"s_mov_b32 s{d}, s{b}")
    a(f"s_and_b32 s{d+1}, s{b+1}, 0xffff")
    a(f"s_mov_b32 s{d+2}, {hex(nbytes)}")
    a(f"s_mov_b32 s{d+3}, 0x00020000")

def kernel_text(name, body, vgpr=256, sgpr=102, accum=256):
    code = f""".globl {name}
.p2align 8
.type {name},@function
{name}:
{body}    s_endpgm
"""
    desc = f""".amdhsa_kernel {name}
  .amdhsa_next_free_vgpr {vgpr}
  .amdhsa_next_free_sgpr {sgpr}
  .amdhsa_accum_offset {accum}
  .amdhsa_group_segment_fixed_size 0
  .amdhsa_kernarg_size 64
  .amdhsa_user_sgpr_count 2
  .amdhsa_user_sgpr_kernarg_segment_ptr 1
  .amdhsa_system_sgpr_workgroup_id_x 1
.end_amdhsa_kernel
"""
    return code, desc

def file_text(launch_lines, kernels, comments=""):
    t = comments
    for l in launch_lines:
        t += f"; @launch {l}\n"
    t += '.amdgcn_target "amdgcn-amd-amdhsa--gfx950"\n.text\n'
    for c, d in kernels:
        t += c
    t += '.section .rodata,"a"\n'
    for c, d in kernels:
        t += ".p2align 6\n" + d
    return t
```

```python
import re
REG = re.compile(r"\b([vsa])(\d+)\b|\b([vsa])\[(\d+):(\d+)\]|\b(vcc|exec|m0|scc)\b")
def regs_of(op):
    out = set()
    for m in REG.finditer(op):
        if m.group(1): out.add((m.group(1), int(m.group(2))))
        elif m.group(3):
            for i in range(int(m.group(4)), int(m.group(5)) + 1): out.add((m.group(3), i))
        else: out.add((m.group(6), 0))
    return out
TRANS = ("v_exp_f32", "v_log_f32", "v_rcp_f32", "v_rsq_f32", "v_sqrt_f32", "v_sin_f32", "v_cos_f32")
def split_ops(s):
    ops = []; depth = 0; cur = ""
    for ch in s:
        if ch == "[": depth += 1
        if ch == "]": depth -= 1
        if ch == "," and depth == 0: ops.append(cur.strip()); cur = ""
        else: cur += ch
    if cur.strip(): ops.append(cur.strip())
    return ops
class I:
    pass
def parse(line):
    t = line.split(";")[0].strip()
    if not t or t.endswith(":") or t.startswith("."): return None
    p = t.split(None, 1); mn = p[0]; ops = split_ops(p[1]) if len(p) > 1 else []
    x = I(); x.mn = mn; x.w = set(); x.r = set(); x.kind = "salu"; x.states = 1; x.A = x.B = x.C = set(); x.passes = 0
    x.dpp = "dpp" in mn or "row_" in t or "quad_perm" in t
    if mn == "s_nop": x.states = int(ops[0], 0) + 1; x.kind = "nop"; return x
    if mn.startswith("v_mfma"):
        x.kind = "mfma"; x.w = regs_of(ops[0]); x.A = regs_of(ops[1]); x.B = regs_of(ops[2]); x.C = regs_of(ops[3]); x.r = x.A | x.B | x.C
        x.passes = 8 if "32x32x16" in mn else 4
        return x
    if mn.startswith("v_"):
        x.kind = "valu"
        if mn.startswith("v_cmp"):
            x.w = regs_of(ops[0]); x.r = set().union(*[regs_of(o) for o in ops[1:]])
        elif mn.startswith("v_permlane") and "swap" in mn:
            x.w = regs_of(ops[0]) | regs_of(ops[1]); x.r = set(x.w)
        elif mn.startswith(("v_add_co", "v_sub_co", "v_addc_co")):
            x.w = regs_of(ops[0]) | regs_of(ops[1]); x.r = set().union(*[regs_of(o) for o in ops[2:]])
        else:
            x.w = regs_of(ops[0]); x.r = set().union(*[regs_of(o) for o in ops[1:]]) if len(ops) > 1 else set()
            if mn.startswith(("v_fmac", "v_dot2c", "v_pk_fmac")): x.r |= x.w
        x.trans = mn.replace("_e32", "").replace("_e64", "") in TRANS
        return x
    if mn.startswith("ds_"):
        x.kind = "ds"
        if "read" in mn or "permute" in mn or "swizzle" in mn:
            x.w = regs_of(ops[0]); x.r = set().union(*[regs_of(o) for o in ops[1:]])
        else: x.r = set().union(*[regs_of(o) for o in ops])
        return x
    if mn.startswith(("buffer_", "global_")):
        x.kind = "vmem"; x.lds = t.rstrip().endswith(" lds") or " lds " in t or "load_lds" in mn
        allr = set().union(*[regs_of(o) for o in ops])
        if "load" in mn and not x.lds:
            x.w = regs_of(ops[0]); x.r = set().union(*[regs_of(o) for o in ops[1:]])
        else: x.r = allr
        x.wide_store = ("store" in mn) and ("x4" in mn or "x3" in mn)
        x.data = regs_of(ops[0]) if mn.startswith("buffer_store") else (regs_of(ops[1]) if mn.startswith("global_store") else set())
        if x.lds: x.r |= {("m0", 0)}
        return x
    if mn.startswith(("s_cmp", "s_cbranch", "s_branch", "s_waitcnt", "s_barrier", "s_endpgm", "s_setprio", "s_sleep")):
        x.r = set().union(*[regs_of(o) for o in ops]) if ops else set()
    else:
        x.w = regs_of(ops[0]) if ops else set(); x.r = set().union(*[regs_of(o) for o in ops[1:]]) if len(ops) > 1 else set()
        if "saveexec" in mn: x.w |= {("exec", 0)}
    return x
def need(p, c):
    n = 0
    vw = {r for r in p.w if r[0] in "va"}; sw = {r for r in p.w if r[0] in ("s", "vcc")}
    if p.kind == "valu":
        if c.kind == "mfma" and vw & c.r: n = max(n, 2)
        if c.kind == "valu":
            if getattr(p, "trans", False) and not c.trans and vw & c.r: n = max(n, 1)
            if c.mn.startswith("v_permlane") and vw & c.r: n = max(n, 2)
            if c.dpp and vw & c.r: n = max(n, 2)
            if c.mn.startswith(("v_readlane", "v_readfirstlane")) and vw & c.r: n = max(n, 1)
            if sw & c.r: n = max(n, 4 if c.mn.startswith(("v_readlane", "v_writelane")) else 2)
        if c.kind == "vmem" and sw & c.r: n = max(n, 5)
        if c.kind == "salu" and sw & c.r: n = max(n, 1)
    if p.kind == "mfma":
        big = p.passes == 8
        if c.kind in ("valu", "ds", "vmem") and p.w & (c.r | c.w): n = max(n, 12 if big else 8)
        if c.kind == "mfma":
            if p.w & (c.A | c.B): n = max(n, 12 if big else 8)
            if p.w & c.C and not (p.w == c.C and p.passes == c.passes): n = max(n, 10 if big else 6)
            if p.w & c.w and not (p.w == c.C): n = max(n, 12 if big else 8)
        if c.kind == "valu" and p.C & c.w: n = max(n, 7 if big else 3)
    if p.kind == "vmem" and getattr(p, "wide_store", False) and p.data & c.w: n = max(n, 2)
    if p.kind == "salu" and ("m0", 0) in p.w and c.kind == "vmem" and c.lds: n = max(n, 1)
    return n
def fix(lines):
    out = []; hist = []
    region = 0; nreg = 0; added = 0
    for line in lines:
        s = line.strip()
        if s.startswith(";SKIP{"): nreg += 1; region = nreg; continue
        if s.startswith(";SKIP}"): region = 0; continue
        x = parse(line)
        if x is None: out.append(line); continue
        dist = 0; pad = 0
        for p, preg in reversed(hist[-40:]):
            n = need(p, x)
            if n > dist: pad = max(pad, n - dist)
            dist += p.states if (preg == 0 or preg == region) else 0
            if dist >= 20: break
        if pad:
            nop = parse(f"s_nop {pad-1}"); out.append(f"    s_nop {pad-1}"); hist.append((nop, region)); added += pad
        out.append(line); hist.append((x, region))
    return out, added
```

```python
import sys, math
from asmlib import *
import hz

PART = 0
FLAGS = 16 << 20
DUMP = 32 << 20
L_X = 0; L_Q = 32768; L_P = 0; L_SPARE = 49152
L_O = 65536; L_STM = 81920; L_STL = 83968; L_RING = 86016
LDS_BYTES = 163840
NRING = (LDS_BYTES - L_RING) // 8192
SC = math.log2(math.e) / math.sqrt(128.0)
import struct
def f2u(x): return struct.unpack("<I", struct.pack("<f", x))[0]

S_X, S_K, S_V, S_WQ, S_WO, S_OUT, S_DBG, S_WS = 20, 24, 28, 32, 36, 40, 44, 48
sW, sB, sKVH, sHALF, sI, sROT = 52, 53, 54, 55, 56, 57
sOWN, sPAR, sWQB, sWOB, sXB, sWL = 58, 59, 60, 61, 62, 63
sT0, sT1, sT2, sT3 = 64, 65, 66, 67
sG = 68
sSC = 69
sCNT = 70
sPA, sPB, sFA, sFB = 72, 73, 74, 75
sEX = 76
sPC = 78
STAMP0 = 80
vLANE, vTMP, vOK, vOV, vOWQ, vOWO, vB128, vTRQ, vTRV, vLIN, vPB = 1, 2, 3, 4, 5, 6, 7, 8, 9, 10, 11
vA0, vA1, vA2, vRDY = 12, 13, 14, 15
STG = 16
SREG = 64
KREG = 128
VREG = 192

def vr(b, n): return f"v[{b}:{b+n-1}]"

class Gen:
    def __init__(self, stamps=False, dump=False, depth=9, pattern="r1"):
        self.a = Asm(); self.stamps = stamps; self.dump = dump; self.depth = depth; self.pattern = pattern
        self.q = []
        self.free = []
        self.pending = []
        self.slot = {}
        self.stream = []; self.nxt = 0
        self.nst = 0
        self.vslot = {}
        self.late = False; self.ph1 = set(); self.ph2 = set()
    def stamp(self):
        if self.stamps:
            i = self.nst; self.nst += 1
            self.a(f"s_memrealtime s[{STAMP0+2*i}:{STAMP0+2*i+1}]")
            self.a("s_waitcnt lgkmcnt(0)")
    def vm(self, tag, text):
        self.a(text); self.q.append(tag)
    def wait_for(self, tags, lgkm0=True):
        idx = [i for i, t in enumerate(self.q) if t in tags]
        s = []
        if idx:
            n = len(self.q) - 1 - max(idx)
            self.q = self.q[max(idx)+1:]
            s.append(f"vmcnt({n})")
        if lgkm0: s.append("lgkmcnt(0)")
        if s: self.a("s_waitcnt " + " ".join(s))
    def barrier(self):
        self.a("s_barrier")
        self.free += self.pending; self.pending = []
    def release(self, u):
        if u[0] != "X": self.pending.append(self.slot[u])
    def inflight(self):
        return sum(1 for t in self.q if isinstance(t, tuple) and t[0] in ("X", "WQ", "K", "V", "WO"))
    def issue_one(self):
        a = self.a
        u = self.stream[self.nxt]
        k = u[0]
        if k == "X":
            dst = L_X + u[1] * 8192
        else:
            ok = [s for s in self.free if self.allowed(u, s)]
            if not ok: return False
            dst = ok[0]; self.free.remove(dst)
        self.slot[u] = dst; self.nxt += 1
        if k == "X":
            a(f"v_add_u32 v{vA0}, {16*u[1]}, v{vA1}")
            a(f"v_and_b32 v{vA0}, 63, v{vA0}")
            a(f"v_lshl_add_u32 v{vA0}, v{vA0}, 4, v{vA2}")
            a(f"s_add_u32 m0, s{sWL}, {dst}")
            self.vm(u, f"buffer_load_dwordx4 v{vA0}, s[{S_X}:{S_X+3}], s{sXB} offen lds")
        elif k in ("K", "V"):
            lab = u[1]; base = sOWN if lab < 8 else sPAR
            a(f"s_add_u32 s{sT0}, s{base}, {(lab & 7) * 8192}")
            a(f"s_add_u32 m0, s{sWL}, {dst}")
            sr, vo = (S_K, vOK) if k == "K" else (S_V, vOV)
            self.vm(u, f"buffer_load_dwordx4 v{vo}, s[{sr}:{sr+3}], s{sT0} offen lds")
        elif k == "WQ":
            hd, j = u[1], u[2]
            a(f"s_add_u32 s{sT0}, s{sROT}, {j}"); a(f"s_and_b32 s{sT0}, s{sT0}, 15"); a(f"s_lshl_b32 s{sT0}, s{sT0}, 18")
            a(f"s_add_u32 s{sT0}, s{sT0}, s{sWQB}")
            if hd: a(f"s_add_u32 s{sT0}, s{sT0}, 256")
            a(f"s_add_u32 m0, s{sWL}, {dst}")
            self.vm(u, f"buffer_load_dwordx4 v{vOWQ}, s[{S_WQ}:{S_WQ+3}], s{sT0} offen lds")
        elif k == "WO":
            cb, ku = u[1], u[2]
            a(f"s_lshr_b32 s{sT0}, s{sB}, 2"); a(f"s_lshl_b32 s{sT0}, s{sT0}, 1"); a(f"s_add_u32 s{sT0}, s{sT0}, {ku}"); a(f"s_and_b32 s{sT0}, s{sT0}, 7")
            a(f"s_lshl_b32 s{sT0}, s{sT0}, 15")
            a(f"s_add_u32 s{sT1}, s{sB}, {cb}"); a(f"s_and_b32 s{sT1}, s{sT1}, 3"); a(f"s_lshl_b32 s{sT1}, s{sT1}, 8")
            a(f"s_add_u32 s{sT0}, s{sT0}, s{sT1}"); a(f"s_add_u32 s{sT0}, s{sT0}, s{sWOB}")
            a(f"s_add_u32 m0, s{sWL}, {dst}")
            self.vm(u, f"buffer_load_dwordx4 v{vOWO}, s[{S_WO}:{S_WO+3}], s{sT0} offen lds")
        return True
    def allowed(self, u, s):
        if self.late: return s not in (L_O, L_O + 8192)
        if s in (L_SPARE, L_SPARE + 8192): return u in self.ph1
        if s in (L_O, L_O + 8192): return u in self.ph1 or u in self.ph2
        return True
    def fill(self, maxn=99):
        n = 0
        while self.nxt < len(self.stream) and self.inflight() < self.depth and n < maxn:
            if not self.issue_one(): break
            n += 1
        return n
    def sel_slot(self, u0, u1, vbase, vdst):
        a = self.a
        a(f"s_cmp_eq_u32 s{sG}, 0")
        a(f"s_mov_b32 s{sT2}, {self.slot[u1]}")
        a(f"s_cselect_b32 s{sT2}, {self.slot[u0]}, s{sT2}")
        a(f"v_add_u32 v{vdst}, s{sT2}, v{vbase}")
    def eat_wq(self, j):
        a = self.a
        u0, u1 = ("WQ", 0, j), ("WQ", 1, j)
        self.sel_slot(u0, u1, vTRQ, vA0)
        for t in range(2):
            ds = 2 * (j & 3) + t
            a(f"v_xor_b32 v{vA1+t}, {ds << 5}, v{vB128}")
            a(f"ds_read_b128 {vr(STG + 8*t + 4, 4)}, v{vA1+t} offset:{L_X + (j >> 2) * 8192}")
            for e in range(2):
                a(f"ds_read_b64_tr_b16 {vr(STG + 8*t + 2*e, 2)}, v{vA0} offset:{t*4096 + e*1024}")
        for t in range(2):
            a(f"s_waitcnt lgkmcnt({3 if t == 0 else 0})")
            c = "0" if (j == 0 and t == 0) else vr(SREG, 16)
            a(f"v_mfma_f32_32x32x16_bf16 {vr(SREG,16)}, {vr(STG+8*t,4)}, {vr(STG+8*t+4,4)}, {c}")
        self.release(u0); self.release(u1)
    def eat_k(self, lab):
        a = self.a; u = ("K", lab); L = a.label("Lk")
        a(f"s_cmp_lg_u32 s{sW}, {lab & 7}")
        a(f"s_cbranch_scc1 {L}")
        a(";SKIP{")
        a(f"v_add_u32 v{vA0}, {self.slot[u]}, v{vB128}")
        for ds in range(8):
            if ds:
                a(f"v_xor_b32 v{vA1 + (ds & 1)}, {ds << 5}, v{vA0}")
            ad = vA1 + (ds & 1) if ds else vA0
            a(f"ds_read_b128 {vr(KREG + (lab >> 3) * 32 + ds * 4, 4)}, v{ad}")
        a(";SKIP}")
        a(f"{L}:")
        self.release(u)
    def eat_v(self, lab):
        a = self.a; u = ("V", lab)
        n = len(self.vslot)
        base = VREG + 8 * n if n < 8 else KREG + 8 * (n - 8)
        self.vslot[lab] = base
        a(f"v_add_u32 v{vA0}, {self.slot[u]}, v{vTRV}")
        for t in range(2):
            for e in range(2):
                a(f"ds_read_b64_tr_b16 {vr(base + 4*t + 2*e, 2)}, v{vA0} offset:{t*4096 + e*2048}")
        self.release(u)
    def dump_regs(self, base, n, region):
        if not self.dump: return
        a = self.a
        a("s_nop 15")
        a(f"s_lshl_b32 s{sT0}, s2, 3"); a(f"s_add_u32 s{sT0}, s{sT0}, s{sW}"); a(f"s_mul_i32 s{sT0}, s{sT0}, {n*256}")
        a(f"s_add_u32 s{sT0}, s{sT0}, {DUMP + region * (40 << 20)}")
        a(f"v_lshlrev_b32 v{vTMP}, 2, v{vLANE}")
        for r in range(n):
            self.vm("dump", f"buffer_store_dword v{base+r}, v{vTMP}, s[{S_WS}:{S_WS+3}], s{sT0} offen")
            a(f"s_add_u32 s{sT0}, s{sT0}, 256")
        a("s_waitcnt vmcnt(0)"); self.q = []

    def build(self):
        a = self.a
        a("s_cmp_ge_u32 s2, 256")
        a("s_cbranch_scc1 L_end")
        a("s_load_dwordx16 s[4:19], s[0:1], 0")
        if self.stamps:
            a(f"s_memrealtime s[{STAMP0}:{STAMP0+1}]"); self.nst = 1
        a(f"v_lshrrev_b32 v{vTMP}, 6, v0")
        a(f"v_and_b32 v{vLANE}, 63, v0")
        a(f"v_readfirstlane_b32 s{sW}, v{vTMP}")
        a(f"s_and_b32 s{sKVH}, s2, 7")
        a(f"s_lshr_b32 s{sB}, s2, 4")
        a(f"s_bfe_u32 s{sHALF}, s2, 0x10003")
        a(f"s_and_b32 s{sI}, s2, 15")
        a(f"s_lshl_b32 s{sT0}, s{sHALF}, 3"); a(f"s_add_u32 s{sROT}, s{sB}, s{sT0}"); a(f"s_and_b32 s{sROT}, s{sROT}, 15")
        a(f"s_lshl_b32 s{sT0}, s{sB}, 3"); a(f"s_add_u32 s{sT0}, s{sT0}, s{sKVH}"); a(f"s_lshl_b32 s{sT0}, s{sT0}, 17")
        a(f"s_lshl_b32 s{sT1}, s{sHALF}, 16"); a(f"s_add_u32 s{sOWN}, s{sT0}, s{sT1}")
        a(f"s_xor_b32 s{sPAR}, s{sOWN}, 0x10000")
        a(f"s_lshl_b32 s{sT0}, s{sKVH}, 1"); a(f"s_add_u32 s{sT0}, s{sT0}, s{sHALF}")
        a(f"s_lshl_b32 s{sWQB}, s{sT0}, 9")
        a(f"s_lshl_b32 s{sWOB}, s{sT0}, 18")
        a(f"s_lshl_b32 s{sXB}, s{sB}, 15")
        a(f"s_lshl_b32 s{sWL}, s{sW}, 10")
        a(f"s_lshr_b32 s{sG}, s{sW}, 2")
        a(f"s_mov_b32 s{sSC}, {hex(f2u(SC))}")
        a(f"v_lshrrev_b32 v16, 4, v0")
        a(f"v_and_b32 v17, 15, v0")
        a(f"v_xor_b32 v18, v16, v17"); a(f"v_and_b32 v18, 15, v18")
        a(f"v_lshlrev_b32 v19, 8, v16")
        a(f"v_lshl_add_u32 v{vOK}, v18, 4, v19")
        a(f"v_and_b32 v20, 3, v16"); a(f"v_lshlrev_b32 v20, 2, v20"); a(f"v_xor_b32 v20, v20, v17"); a(f"v_lshlrev_b32 v20, 4, v20")
        a(f"v_add_u32 v{vOV}, v19, v20")
        a(f"v_lshl_add_u32 v{vOWQ}, v16, 13, v20")
        a(f"v_lshl_add_u32 v{vOWO}, v16, 10, v20")
        a(f"s_lshl_b32 s{sT0}, s{sROT}, 2")
        a(f"v_add_u32 v{vA1}, s{sT0}, v18")
        a(f"v_lshlrev_b32 v{vA2}, 10, v16")
        a(f"v_and_b32 v16, 31, v{vLANE}"); a(f"v_lshrrev_b32 v17, 5, v{vLANE}")
        a(f"v_xor_b32 v18, v16, v17"); a(f"v_and_b32 v18, 15, v18"); a(f"v_lshlrev_b32 v18, 4, v18")
        a(f"v_lshl_add_u32 v{vB128}, v16, 8, v18")
        a(f"v_bfe_u32 v18, v{vLANE}, 2, 2")
        a(f"s_and_b32 s{sT0}, s{sW}, 3")
        a(f"v_xor_b32 v19, s{sT0}, v18"); a(f"v_lshlrev_b32 v19, 6, v19")
        a(f"v_lshl_add_u32 v19, v18, 8, v19")
        a(f"v_bfe_u32 v20, v{vLANE}, 4, 1"); a(f"v_lshl_add_u32 v19, v20, 5, v19")
        a(f"v_and_b32 v20, 3, v{vLANE}")
        a(f"v_lshl_add_u32 v{vTRV}, v20, 3, v19"); a(f"v_lshl_add_u32 v{vTRV}, v17, 10, v{vTRV}")
        a(f"v_and_b32 v21, 1, v20"); a(f"v_lshrrev_b32 v20, 1, v20"); a(f"v_lshl_add_u32 v20, v21, 1, v20")
        a(f"v_lshl_add_u32 v{vTRQ}, v20, 3, v19"); a(f"v_lshl_add_u32 v{vTRQ}, v17, 11, v{vTRQ}")
        a(f"v_lshlrev_b32 v{vLIN}, 4, v{vLANE}")
        a(f"s_lshl_b32 s{sT0}, s{sG}, 15")
        a(f"v_add_u32 v{vPB}, s{sT0}, v{vLIN}")
        a("s_waitcnt lgkmcnt(0)")
        srd(a, S_X, 4, 512 << 10); srd(a, S_WQ, 10, 4 << 20); srd(a, S_K, 6, 16 << 20); srd(a, S_V, 8, 16 << 20)
        srd(a, S_WO, 12, 4 << 20); srd(a, S_OUT, 14, 512 << 10); srd(a, S_DBG, 16, 256); srd(a, S_WS, 18, WS_BYTES)
        O = [("K", i) for i in range(8)] + [("V", i) for i in range(8)]
        P = [("K", 8 + i) for i in range(8)] + [("V", 8 + i) for i in range(8)]
        lag = 3; kv = []
        for i in range(16 + lag):
            if i < 16: kv.append(O[i])
            if i - lag >= 0: kv.append(P[i - lag])
        steps = []; pos = 0
        for j in range(16):
            ns = 2 if (j & 1) else 1
            steps.append([("WQ", 0, j), ("WQ", 1, j)] + kv[pos:pos+ns]); pos += ns
        assert pos == 24
        rest_v = kv[pos:]
        wo = []
        for st in range(2):
            for ku in range(8):
                wo += [("WO", 2*st, ku), ("WO", 2*st+1, ku)]
        X = [("X", i) for i in range(4)]
        self.stream = [X[0]] + steps[0] + X[1:] + sum(steps[1:], []) + rest_v + wo
        self.ph1 = set(sum(steps, [])); self.ph2 = set(rest_v[:6])
        ring = [L_RING + i * 8192 for i in range(NRING)]
        early = [L_SPARE, L_SPARE + 8192, L_O, L_O + 8192]
        self.free = early + ring
        a(f"s_or_b32 s{sT0}, s{sI}, s{sW}")
        a(f"s_cmp_lg_u32 s{sT0}, 0"); a("s_cbranch_scc1 L_noclr")
        a(";SKIP{")
        for r in range(4): a(f"v_mov_b32 v{24+r}, 0")
        a(f"v_lshrrev_b32 v22, 2, v{vLANE}"); a(f"v_and_b32 v23, 3, v{vLANE}"); a(f"v_lshlrev_b32 v23, 4, v23"); a(f"v_lshl_add_u32 v22, v22, 7, v23")
        a(f"s_lshl_b32 s{sT0}, s{sB}, 11"); a(f"s_add_u32 s{sT0}, s{sT0}, {FLAGS}")
        a(f"buffer_store_dwordx4 v[24:27], v22, s[{S_WS}:{S_WS+3}], s{sT0} offen sc1")
        a(";SKIP}")
        a("L_noclr:")
        self.fill()
        assert all(x in self.slot for x in X)
        self.stamp()
        for j, st in enumerate(steps):
            needs = set(st) | {("X", j >> 2)}
            self.wait_for(needs); self.barrier()
            self.fill()
            if j == 1:
                a(f"s_or_b32 s{sT0}, s{sI}, s{sW}")
                a(f"s_cmp_lg_u32 s{sT0}, 0"); a("s_cbranch_scc1 L_nordy")
                a(";SKIP{")
                a(f"v_mov_b32 v24, 1"); a(f"v_mov_b32 v25, 0")
                a(f"s_lshl_b32 s{sT0}, s{sB}, 2")
                a(f"s_mov_b64 exec, 1")
                a(f"buffer_store_dword v24, v25, s[{S_DBG}:{S_DBG+3}], s{sT0} offen sc1")
                a(f"s_mov_b64 exec, -1")
                a("s_nop 1")
                a(";SKIP}")
                a("L_nordy:")
            self.eat_wq(j)
            for u in st[2:]:
                if u[0] == "K": self.eat_k(u[1])
                else: self.eat_v(u[1])
        for r in range(8):
            a(f"v_cvt_pk_bf16_f32 v{STG+r}, v{SREG+2*r}, v{SREG+2*r+1}")
        a(f"s_lshl_b32 s{sT0}, s{sW}, 11")
        a(f"v_add_u32 v{vA0}, s{sT0}, v{vLIN}")
        for t in range(2):
            a(f"ds_write_b128 v{vA0}, {vr(STG+4*t,4)} offset:{L_Q + t*1024}")
        self.dump_regs(STG, 8, 0)
        self.wait_for(set()); self.barrier()
        self.free = [s for s in self.free if s not in (L_SPARE, L_SPARE + 8192)]
        self.stamp()
        a(f"v_mov_b32 v{vTMP}, 0"); a(f"s_lshl_b32 s{sT0}, s{sB}, 2")
        self.vm("rdy", f"buffer_load_dword v{vRDY}, v{vTMP}, s[{S_DBG}:{S_DBG+3}], s{sT0} offen sc1")
        order = [(ds, hd) for ds in range(8) for hd in range(2)]
        NB = 8
        def qread(n):
            ds, hd = order[n]
            a(f"ds_read_b128 {vr(STG + (n % NB)*4, 4)}, v{vLIN} offset:{L_Q + (hd*8 + ds)*1024}")
        for n in range(NB): qread(n)
        for n in range(16):
            ds, hd = order[n]
            outst = min(16, n + NB) - n - 1
            a(f"s_waitcnt lgkmcnt({outst})")
            for tl in range(2):
                d = SREG + (hd*2 + tl) * 16
                c = "0" if ds == 0 else vr(d, 16)
                a(f"v_mfma_f32_32x32x16_bf16 {vr(d,16)}, {vr(KREG + tl*32 + ds*4, 4)}, {vr(STG + (n % NB)*4, 4)}, {c}")
            if n + NB < 16: qread(n + NB)
            if n % 4 == 1: self.fill(1)
        self.dump_regs(SREG, 64, 1)
        a(f"v_and_b32 v{vA0}, 31, v{vLANE}"); a(f"v_lshlrev_b32 v{vA0}, 5, v{vA0}")
        a(f"s_lshl_b32 s{sT0}, s{sW}, 2"); a(f"v_add_u32 v{vA1}, s{sT0}, v{vA0}")
        for hd in range(2):
            b0 = SREG + hd*32; m = STG + hd
            a(f"v_max_f32 v{m}, v{b0}, v{b0+1}")
            for r in range(2, 32, 2): a(f"v_max3_f32 v{m}, v{m}, v{b0+r}, v{b0+r+1}")
        a(f"v_permlane32_swap_b32 v{STG}, v{STG+1}")
        a(f"v_max_f32 v{STG}, v{STG}, v{STG+1}")
        a(f"v_lshlrev_b32 v{vA2}, 5, v{vLANE}"); a(f"v_add_u32 v{vA2}, s{sT0}, v{vA2}")
        a(f"ds_write_b32 v{vA2}, v{STG} offset:{L_STM - 65536 + 65536}" if L_STM < 65536 else f"v_add_u32 v{vA2}, {L_STM}, v{vA2}")
        if L_STM >= 65536: a(f"ds_write_b32 v{vA2}, v{STG}")
        landed = [u for u in rest_v[:6]]
        self.wait_for(set(landed)); self.barrier()
        self.stamp()
        a(f"v_add_u32 v{vA0}, {L_STM}, v{vA0}")
        for hd in range(2):
            for i in range(2):
                a(f"ds_read_b128 {vr(STG + 4 + hd*8 + i*4, 4)}, v{vA0} offset:{hd*1024 + i*16}")
        a(f"v_mov_b32 v{vTMP}, v{vA0}")
        for u in landed: self.eat_v(u[1])
        a(f"s_waitcnt lgkmcnt({min(15, 4*len(landed))})")
        for hd in range(2):
            b0 = STG + 4 + hd*8; m = STG + hd
            a(f"v_max3_f32 v{m}, v{b0}, v{b0+1}, v{b0+2}")
            a(f"v_max3_f32 v{m}, v{m}, v{b0+3}, v{b0+4}")
            a(f"v_max3_f32 v{m}, v{m}, v{b0+5}, v{b0+6}")
            a(f"v_max_f32 v{m}, v{m}, v{b0+7}")
            a(f"v_mul_f32 v{m}, s{sSC}, v{m}")
        a(f"s_lshl_b32 s{sT0}, s{sW}, 11"); a(f"v_add_u32 v{vA1}, s{sT0}, v{vLIN}")
        PK = STG + 20
        g = 0
        for hd in range(2):
            m = STG + hd; l = STG + 2 + hd
            for tl in range(2):
                for t in range(2):
                    b0 = SREG + (hd*2 + tl)*16 + 8*t
                    for r in range(8): a(f"v_fma_f32 v{b0+r}, v{b0+r}, s{sSC}, -v{m}")
                    for r in range(8): a(f"v_exp_f32 v{b0+r}, v{b0+r}")
                    pk = PK + (g & 3) * 4; g += 1
                    for r in range(4): a(f"v_cvt_pk_bf16_f32 v{pk+r}, v{b0+2*r}, v{b0+2*r+1}")
                    a(f"ds_write_b128 v{vA1}, {vr(pk,4)} offset:{L_P + (hd*32 + tl*16 + t)*1024}")
                    for r in range(8):
                        if tl == 0 and t == 0 and r == 0: continue
                        if tl == 0 and t == 0 and r == 1: a(f"v_add_f32 v{l}, v{b0}, v{b0+1}")
                        else: a(f"v_add_f32 v{l}, v{l}, v{b0+r}")
            if hd == 0:
                self.wait_for(set()); self.barrier(); self.fill(4)
        a(f"v_permlane32_swap_b32 v{STG+2}, v{STG+3}")
        a(f"v_add_f32 v{STG+2}, v{STG+2}, v{STG+3}")
        a(f"ds_write_b32 v{vA2}, v{STG+2} offset:{L_STL - L_STM}")
        landed = rest_v[6:]
        self.wait_for(set(landed)); self.barrier()
        self.stamp()
        self.fill(3)
        for u in landed: self.eat_v(u[1])
        OACC = SREG
        a(f"s_lshl_b32 s{sT0}, s{sG}, 10"); a(f"v_add_u32 v{vTMP}, s{sT0}, v{vTMP}")
        for i in range(2):
            a(f"ds_read_b128 {vr(SREG + 16 + i*4, 4)}, v{vTMP} offset:{L_STL - L_STM + i*16}")
        porder = [(lab, t) for lab in self.vslot.keys() for t in range(2)]
        NB = 8
        def pread(n):
            lab, t = porder[n]
            a(f"ds_read_b128 {vr(STG + (n % NB)*4, 4)}, v{vPB} offset:{L_P + (lab*2 + t)*1024}")
        for n in range(NB): pread(n)
        for n in range(32):
            lab, t = porder[n]
            outst = min(32, n + NB) - n - 1
            a(f"s_waitcnt lgkmcnt({outst})")
            c = "0" if n == 0 else vr(OACC, 16)
            a(f"v_mfma_f32_32x32x16_bf16 {vr(OACC,16)}, {vr(self.vslot[lab] + 4*t, 4)}, {vr(STG + (n % NB)*4, 4)}, {c}")
            if n + NB < 32: pread(n + NB)
            if n == 2:
                b0 = SREG + 16
                a(f"v_add_f32 v{b0}, v{b0}, v{b0+1}")
                for r in range(2, 8): a(f"v_add_f32 v{b0}, v{b0}, v{b0+r}")
                a(f"v_rcp_f32 v{b0}, v{b0}")
            if n % 6 == 3: self.fill(1)
        for r in range(16): a(f"v_mul_f32 v{OACC+r}, v{OACC+r}, v{SREG+16}")
        for r in range(8): a(f"v_cvt_pk_bf16_f32 v{STG+r}, v{OACC+2*r}, v{OACC+2*r+1}")
        a(f"s_lshl_b32 s{sT0}, s{sW}, 11"); a(f"s_add_u32 s{sT0}, s{sT0}, {L_O}")
        a(f"v_add_u32 v{vA0}, s{sT0}, v{vLIN}")
        assert L_O in self.free and L_O + 8192 in self.free
        for t in range(2):
            a(f"ds_write_b128 v{vA0}, {vr(STG+4*t,4)} offset:{t*1024}")
        self.dump_regs(STG, 8, 2)
        first = [("WO", 0, 0), ("WO", 1, 0)]
        self.wait_for(set(first)); self.barrier()
        self.stamp()
        self.late = True
        self.free = [s for s in self.free if s not in (L_O, L_O + 8192)] + [L_P + i * 8192 for i in range(8)]
        self.fill()
        OF = KREG
        for ku in range(8):
            a(f"s_lshr_b32 s{sT0}, s{sB}, 2"); a(f"s_lshl_b32 s{sT0}, s{sT0}, 1"); a(f"s_add_u32 s{sT0}, s{sT0}, {ku}"); a(f"s_and_b32 s{sT0}, s{sT0}, 7")
            a(f"s_lshl_b32 s{sT0}, s{sT0}, 11"); a(f"s_add_u32 s{sT0}, s{sT0}, {L_O}")
            a(f"v_add_u32 v{vA1 + (ku & 1)}, s{sT0}, v{vLIN}")
            for t in range(2):
                a(f"ds_read_b128 {vr(OF + ku*8 + t*4, 4)}, v{vA1 + (ku & 1)} offset:{t*1024}")
        for st, (sp, sf) in enumerate(((sPA, sFA), (sPB, sFB))):
            a(f"s_add_u32 s{sT0}, s{sB}, s{sG}"); a(f"s_add_u32 s{sT0}, s{sT0}, {2*st}"); a(f"s_and_b32 s{sT0}, s{sT0}, 3")
            a(f"s_lshl_b32 s{sT0}, s{sT0}, 2"); a(f"s_and_b32 s{sT1}, s{sW}, 3"); a(f"s_add_u32 s{sT0}, s{sT0}, s{sT1}")
            a(f"s_lshl_b32 s{sT1}, s{sB}, 4"); a(f"s_add_u32 s{sT0}, s{sT0}, s{sT1}")
            a(f"s_lshl_b32 s{sp}, s{sT0}, 15"); a(f"s_lshl_b32 s{sT1}, s{sI}, 11"); a(f"s_add_u32 s{sp}, s{sp}, s{sT1}")
            if PART: a(f"s_add_u32 s{sp}, s{sp}, {PART}")
            a(f"s_lshl_b32 s{sf}, s{sT0}, 7"); a(f"s_lshl_b32 s{sT1}, s{sI}, 2"); a(f"s_add_u32 s{sf}, s{sf}, s{sT1}"); a(f"s_add_u32 s{sf}, s{sf}, {FLAGS}")
        def flag(sf, tag):
            a(f"v_mov_b32 v{vTMP}, 0")
            a("s_mov_b64 exec, 1")
            self.vm(tag, f"buffer_store_dword v{vRDY}, v{vTMP}, s[{S_WS}:{S_WS+3}], s{sf} offen sc1")
            a("s_mov_b64 exec, -1")
        for st in range(2):
            acc = SREG + 32 + st * 16
            for ku in range(8):
                u0, u1 = ("WO", 2*st, ku), ("WO", 2*st+1, ku)
                if not (st == 0 and ku == 0):
                    self.wait_for({u0, u1}); self.barrier(); self.fill()
                if st == 1 and "stA" not in self.q and not getattr(self, "flagA", False):
                    self.flagA = True; flag(sFA, "flA")
                self.sel_slot(u0, u1, vTRV, vA0)
                for t in range(2):
                    for e in range(2):
                        a(f"ds_read_b64_tr_b16 {vr(STG + 4*t + 2*e, 2)}, v{vA0} offset:{t*4096 + e*2048}")
                for t in range(2):
                    a(f"s_waitcnt lgkmcnt({2 if t == 0 else 0})")
                    c = "0" if (ku == 0 and t == 0) else vr(acc, 16)
                    a(f"v_mfma_f32_32x32x16_bf16 {vr(acc,16)}, {vr(STG+4*t,4)}, {vr(OF + ku*8 + t*4, 4)}, {c}")
                self.release(u0); self.release(u1)
            pk = STG + 16 + st * 8
            for r in range(8): a(f"v_cvt_pk_bf16_f32 v{pk+r}, v{acc+2*r}, v{acc+2*r+1}")
            if st == 0:
                assert "rdy" not in self.q
                a(f"s_mov_b32 s{sCNT}, 200000")
                a("L_rdy:")
                a(f"v_cmp_eq_u32 vcc, 1, v{vRDY}")
                a("s_cbranch_vccnz L_rdy_ok")
                a(f"v_mov_b32 v{vTMP}, 0"); a(f"s_lshl_b32 s{sT0}, s{sB}, 2")
                a(f"buffer_load_dword v{vRDY}, v{vTMP}, s[{S_DBG}:{S_DBG+3}], s{sT0} offen sc1")
                a("s_waitcnt vmcnt(0)")
                a(f"s_sub_u32 s{sCNT}, s{sCNT}, 1"); a(f"s_cmp_lg_u32 s{sCNT}, 0"); a("s_cbranch_scc1 L_rdy")
                a("L_rdy_ok:")
                a(f"v_mov_b32 v{vRDY}, 1")
            sp = sPA if st == 0 else sPB
            for s in range(2):
                self.vm("stA" if st == 0 else "stB", f"buffer_store_dwordx4 {vr(pk+4*s,4)}, v{vLIN}, s[{S_WS}:{S_WS+3}], s{sp} offen offset:{s*1024} sc1")
        self.stamp()
        if not getattr(self, "flagA", False):
            self.wait_for({"stA"}, lgkm0=False); flag(sFA, "flA")
        self.wait_for({"stB"}, lgkm0=False); flag(sFB, "flB")
        self.stamp()
        a(f"v_and_b32 v{vA0}, 15, v{vLANE}"); a(f"v_lshlrev_b32 v{vA1}, 2, v{vA0}")
        a(f"s_lshl_b32 s{sT0}, s2, 7"); a(f"s_add_u32 s{sT0}, s{sT0}, {FLAGS}")
        a(f"v_lshrrev_b32 v{vA2}, 4, v{vLANE}")
        a(f"v_lshlrev_b32 v{vTMP}, 11, v{vA2}"); a(f"v_lshl_add_u32 v{vTMP}, v{vA0}, 4, v{vTMP}")
        a(f"s_lshl_b32 s{sT1}, s2, 15"); a(f"s_lshl_b32 s{sT2}, s{sW}, 8"); a(f"s_add_u32 s{sT1}, s{sT1}, s{sT2}")
        if PART: a(f"s_add_u32 s{sT1}, s{sT1}, {PART}")
        a(f"s_cmp_lg_u32 s{sW}, 0"); a("s_cbranch_scc1 L_polled")
        a(f"s_mov_b32 s{sCNT}, 200000")
        a("L_poll:")
        a(f"buffer_load_dword v{STG}, v{vA1}, s[{S_WS}:{S_WS+3}], s{sT0} offen sc1")
        a("s_waitcnt vmcnt(0)")
        a(f"v_cmp_ne_u32 vcc, 1, v{STG}")
        a("s_cbranch_vccz L_polled")
        a(f"s_sub_u32 s{sCNT}, s{sCNT}, 1"); a(f"s_cmp_lg_u32 s{sCNT}, 0"); a("s_cbranch_scc1 L_poll")
        a("L_polled:")
        a("s_barrier")
        self.stamp()
        for i in range(4):
            a(f"buffer_load_dwordx4 {vr(STG + 4*i, 4)}, v{vTMP}, s[{S_WS}:{S_WS+3}], s{sT1} offen sc1")
            if i < 3: a(f"s_add_u32 s{sT1}, s{sT1}, 8192")
        a(f"v_lshlrev_b32 v{vA0}, 10, v{vA0}")
        a(f"v_lshrrev_b32 v{vA1}, 1, v{vA2}"); a(f"v_lshl_add_u32 v{vA0}, v{vA1}, 4, v{vA0}")
        a(f"v_and_b32 v{vA1}, 1, v{vA2}"); a(f"v_lshl_add_u32 v{vA0}, v{vA1}, 2, v{vA0}")
        a(f"s_lshl_b32 s{sT0}, s{sB}, 15"); a(f"s_and_b32 s{sT2}, s{sW}, 1"); a(f"s_lshl_b32 s{sT2}, s{sT2}, 14"); a(f"s_add_u32 s{sT0}, s{sT0}, s{sT2}")
        a(f"s_lshl_b32 s{sT2}, s{sI}, 6"); a(f"s_add_u32 s{sT0}, s{sT0}, s{sT2}")
        a(f"s_lshl_b32 s{sT2}, s{sG}, 5"); a(f"s_add_u32 s{sT0}, s{sT0}, s{sT2}")
        a(f"s_bfe_u32 s{sT2}, s{sW}, 0x10001"); a(f"s_lshl_b32 s{sT2}, s{sT2}, 3"); a(f"s_add_u32 s{sT0}, s{sT0}, s{sT2}")
        AC = SREG
        a(f"s_mov_b32 s{sT3}, 0xffff0000")
        for i in range(4):
            a(f"s_waitcnt vmcnt({3-i})")
            for j in range(4):
                src = STG + 4*i + j
                if i == 0:
                    a(f"v_lshlrev_b32 v{AC+2*j}, 16, v{src}"); a(f"v_and_b32 v{AC+2*j+1}, s{sT3}, v{src}")
                else:
                    a(f"v_lshlrev_b32 v{AC+8}, 16, v{src}"); a(f"v_and_b32 v{AC+9}, s{sT3}, v{src}")
                    a(f"v_add_f32 v{AC+2*j}, v{AC+2*j}, v{AC+8}"); a(f"v_add_f32 v{AC+2*j+1}, v{AC+2*j+1}, v{AC+9}")
        for k in range(4): a(f"v_permlane32_swap_b32 v{AC+k}, v{AC+k+4}")
        for k in range(4): a(f"v_add_f32 v{AC+k}, v{AC+k}, v{AC+k+4}")
        for k in range(2): a(f"v_permlane16_swap_b32 v{AC+k}, v{AC+k+2}")
        for k in range(2): a(f"v_add_f32 v{AC+k}, v{AC+k}, v{AC+k+2}")
        a(f"v_cvt_pk_bf16_f32 v{AC}, v{AC}, v{AC+1}")
        a(f"buffer_store_dword v{AC}, v{vA0}, s[{S_OUT}:{S_OUT+3}], s{sT0} offen")
        if self.stamps:
            a("s_waitcnt vmcnt(0)"); self.stamp()
            ns = self.nst
            a(f"s_lshl_b32 s{sT0}, s2, 3"); a(f"s_add_u32 s{sT0}, s{sT0}, s{sW}"); a(f"s_mul_i32 s{sT0}, s{sT0}, {ns*8}"); a(f"s_add_u32 s{sT0}, s{sT0}, {hex(STAMP_OFF)}")
            a(f"v_mov_b32 v{vTMP}, 0"); a("s_mov_b64 exec, 1")
            for i in range(ns):
                a(f"v_mov_b32 v16, s{STAMP0+2*i}"); a(f"v_mov_b32 v17, s{STAMP0+2*i+1}")
                a(f"buffer_store_dwordx2 v[16:17], v{vTMP}, s[{S_WS}:{S_WS+3}], s{sT0} offen offset:{8*i}"); a("s_nop 1")
        a("L_end:")
        assert self.nxt == len(self.stream)
        lines, added = hz.fix(self.a.lines)
        return "\n".join(lines) + "\n", added

HEADER = open("standalone__gqa_block_cached__near_ridge.s.ref").read().split("; Override")[0]
def make(fn, **kw):
    g = Gen(**kw); body, added = g.build()
    code, desc = kernel_text(NAME, body, vgpr=256, sgpr=102, accum=256)
    desc = desc.replace("  .amdhsa_kernarg_size", "  .amdhsa_float_denorm_mode_32 3\n  .amdhsa_kernarg_size")
    t = file_text([f"grid=(256,1,1) block=(512,1,1) lds={LDS_BYTES}"], [(code, desc)], comments=HEADER)
    open(fn, "w").write(t)
    print(fn, "nops added", added, "stamps", g.nst, "lines", len(body.splitlines()))
if __name__ == "__main__":
    make("k_plain.s"); make("k_stamp.s", stamps=True); make("k_dump.s", dump=True)
```

```python
import sys, math
from asmlib import *
import hz

PART = 0
FLAGS = 16 << 20
DUMP = 32 << 20
L_X = 0; L_Q = 32768; L_P = 0; L_SPARE = 49152
L_O = 65536; L_STM = 81920; L_STL = 83968; L_RING = 86016
LDS_BYTES = 163840
NRING = (LDS_BYTES - L_RING) // 8192
SC = math.log2(math.e) / math.sqrt(128.0)
import struct
def f2u(x): return struct.unpack("<I", struct.pack("<f", x))[0]

S_X, S_K, S_V, S_WQ, S_WO, S_OUT, S_DBG, S_WS = 20, 24, 28, 32, 36, 40, 44, 48
sW, sB, sKVH, sHALF, sI, sROT = 52, 53, 54, 55, 56, 57
sOWN, sPAR, sWQB, sWOB, sXB, sWL = 58, 59, 60, 61, 62, 63
sT0, sT1, sT2, sT3 = 64, 65, 66, 67
sG = 68
sSC = 69
sCNT = 70
sPA, sPB, sFA, sFB = 72, 73, 74, 75
sEX = 76
sPC = 78
STAMP0 = 80
vLANE, vTMP, vOK, vOV, vOWQ, vOWO, vB128, vTRQ, vTRV, vLIN, vPB = 1, 2, 3, 4, 5, 6, 7, 8, 9, 10, 11
vA0, vA1, vA2, vRDY = 12, 13, 14, 15
STG = 16
SREG = 64
KREG = 128
VREG = 192

def vr(b, n): return f"v[{b}:{b+n-1}]"

class Gen:
    def __init__(self, stamps=False, dump=False, depth=9, pattern="r1", dbgstamps=False):
        self.dbgstamps = dbgstamps
        self.a = Asm(); self.stamps = stamps; self.dump = dump; self.depth = depth; self.pattern = pattern
        self.q = []
        self.free = []
        self.pending = []
        self.slot = {}
        self.stream = []; self.nxt = 0
        self.nst = 0
        self.vslot = {}
        self.late = False; self.ph1 = set(); self.ph2 = set()
    def stamp(self):
        if self.stamps:
            i = self.nst; self.nst += 1
            self.a(f"s_memrealtime s[{STAMP0+2*i}:{STAMP0+2*i+1}]")
            self.a("s_waitcnt lgkmcnt(0)")
    def vm(self, tag, text):
        self.a(text); self.q.append(tag)
    def wait_for(self, tags, lgkm0=True):
        idx = [i for i, t in enumerate(self.q) if t in tags]
        s = []
        if idx:
            n = len(self.q) - 1 - max(idx)
            self.q = self.q[max(idx)+1:]
            s.append(f"vmcnt({n})")
        if lgkm0: s.append("lgkmcnt(0)")
        if s: self.a("s_waitcnt " + " ".join(s))
    def barrier(self):
        self.a("s_barrier")
        self.free += self.pending; self.pending = []
    def release(self, u):
        if u[0] != "X": self.pending.append(self.slot[u])
    def inflight(self):
        return sum(1 for t in self.q if isinstance(t, tuple) and t[0] in ("X", "WQ", "K", "V", "WO"))
    def issue_one(self):
        a = self.a
        u = self.stream[self.nxt]
        k = u[0]
        if k == "X":
            dst = L_X + u[1] * 8192
        else:
            ok = [s for s in self.free if self.allowed(u, s)]
            if not ok: return False
            dst = ok[0]; self.free.remove(dst)
        self.slot[u] = dst; self.nxt += 1
        if k == "X":
            a(f"v_add_u32 v{vA0}, {16*u[1]}, v{vA1}")
            a(f"v_and_b32 v{vA0}, 63, v{vA0}")
            a(f"v_lshl_add_u32 v{vA0}, v{vA0}, 4, v{vA2}")
            a(f"s_add_u32 m0, s{sWL}, {dst}")
            self.vm(u, f"buffer_load_dwordx4 v{vA0}, s[{S_X}:{S_X+3}], s{sXB} offen lds")
        elif k in ("K", "V"):
            lab = u[1]; base = sOWN if lab < 8 else sPAR
            a(f"s_add_u32 s{sT0}, s{base}, {(lab & 7) * 8192}")
            a(f"s_add_u32 m0, s{sWL}, {dst}")
            sr, vo = (S_K, vOK) if k == "K" else (S_V, vOV)
            self.vm(u, f"buffer_load_dwordx4 v{vo}, s[{sr}:{sr+3}], s{sT0} offen lds")
        elif k == "WQ":
            hd, j = u[1], u[2]
            a(f"s_add_u32 s{sT0}, s{sROT}, {j}"); a(f"s_and_b32 s{sT0}, s{sT0}, 15"); a(f"s_lshl_b32 s{sT0}, s{sT0}, 18")
            a(f"s_add_u32 s{sT0}, s{sT0}, s{sWQB}")
            if hd: a(f"s_add_u32 s{sT0}, s{sT0}, 256")
            a(f"s_add_u32 m0, s{sWL}, {dst}")
            self.vm(u, f"buffer_load_dwordx4 v{vOWQ}, s[{S_WQ}:{S_WQ+3}], s{sT0} offen lds")
        elif k == "WO":
            cb, ku = u[1], u[2]
            a(f"s_lshr_b32 s{sT0}, s{sB}, 2"); a(f"s_lshl_b32 s{sT0}, s{sT0}, 1"); a(f"s_add_u32 s{sT0}, s{sT0}, {ku}"); a(f"s_and_b32 s{sT0}, s{sT0}, 7")
            a(f"s_lshl_b32 s{sT0}, s{sT0}, 15")
            a(f"s_add_u32 s{sT1}, s{sB}, {cb}"); a(f"s_and_b32 s{sT1}, s{sT1}, 3"); a(f"s_lshl_b32 s{sT1}, s{sT1}, 8")
            a(f"s_add_u32 s{sT0}, s{sT0}, s{sT1}"); a(f"s_add_u32 s{sT0}, s{sT0}, s{sWOB}")
            a(f"s_add_u32 m0, s{sWL}, {dst}")
            self.vm(u, f"buffer_load_dwordx4 v{vOWO}, s[{S_WO}:{S_WO+3}], s{sT0} offen lds")
        return True
    def allowed(self, u, s):
        if self.late: return s not in (L_O, L_O + 8192)
        if s in (L_SPARE, L_SPARE + 8192): return u in self.ph1
        if s in (L_O, L_O + 8192): return u in self.ph1 or u in self.ph2
        return True
    def fill(self, maxn=99):
        n = 0
        while self.nxt < len(self.stream) and self.inflight() < self.depth and n < maxn:
            if not self.issue_one(): break
            n += 1
        return n
    def sel_slot(self, u0, u1, vbase, vdst):
        a = self.a
        a(f"s_cmp_eq_u32 s{sG}, 0")
        a(f"s_mov_b32 s{sT2}, {self.slot[u1]}")
        a(f"s_cselect_b32 s{sT2}, {self.slot[u0]}, s{sT2}")
        a(f"v_add_u32 v{vdst}, s{sT2}, v{vbase}")
    def eat_wq(self, j):
        a = self.a
        u0, u1 = ("WQ", 0, j), ("WQ", 1, j)
        self.sel_slot(u0, u1, vTRQ, vA0)
        for t in range(2):
            ds = 2 * (j & 3) + t
            a(f"v_xor_b32 v{vA1+t}, {ds << 5}, v{vB128}")
            a(f"ds_read_b128 {vr(STG + 8*t + 4, 4)}, v{vA1+t} offset:{L_X + (j >> 2) * 8192}")
            for e in range(2):
                a(f"ds_read_b64_tr_b16 {vr(STG + 8*t + 2*e, 2)}, v{vA0} offset:{t*4096 + e*1024}")
        for t in range(2):
            a(f"s_waitcnt lgkmcnt({3 if t == 0 else 0})")
            c = "0" if (j == 0 and t == 0) else vr(SREG, 16)
            a(f"v_mfma_f32_32x32x16_bf16 {vr(SREG,16)}, {vr(STG+8*t,4)}, {vr(STG+8*t+4,4)}, {c}")
        self.release(u0); self.release(u1)
    def eat_k(self, lab):
        a = self.a; u = ("K", lab); L = a.label("Lk")
        a(f"s_cmp_lg_u32 s{sW}, {lab & 7}")
        a(f"s_cbranch_scc1 {L}")
        a(";SKIP{")
        a(f"v_add_u32 v{vA0}, {self.slot[u]}, v{vB128}")
        for ds in range(8):
            if ds:
                a(f"v_xor_b32 v{vA1 + (ds & 1)}, {ds << 5}, v{vA0}")
            ad = vA1 + (ds & 1) if ds else vA0
            a(f"ds_read_b128 {vr(KREG + (lab >> 3) * 32 + ds * 4, 4)}, v{ad}")
        a(";SKIP}")
        a(f"{L}:")
        self.release(u)
    def eat_v(self, lab):
        a = self.a; u = ("V", lab)
        n = len(self.vslot)
        base = VREG + 8 * n if n < 8 else KREG + 8 * (n - 8)
        self.vslot[lab] = base
        a(f"v_add_u32 v{vA0}, {self.slot[u]}, v{vTRV}")
        for t in range(2):
            for e in range(2):
                a(f"ds_read_b64_tr_b16 {vr(base + 4*t + 2*e, 2)}, v{vA0} offset:{t*4096 + e*2048}")
        self.release(u)
    def dump_regs(self, base, n, region):
        if not self.dump: return
        a = self.a
        a("s_nop 15")
        a(f"s_lshl_b32 s{sT0}, s2, 3"); a(f"s_add_u32 s{sT0}, s{sT0}, s{sW}"); a(f"s_mul_i32 s{sT0}, s{sT0}, {n*256}")
        a(f"s_add_u32 s{sT0}, s{sT0}, {DUMP + region * (40 << 20)}")
        a(f"v_lshlrev_b32 v{vTMP}, 2, v{vLANE}")
        for r in range(n):
            self.vm("dump", f"buffer_store_dword v{base+r}, v{vTMP}, s[{S_WS}:{S_WS+3}], s{sT0} offen")
            a(f"s_add_u32 s{sT0}, s{sT0}, 256")
        a("s_waitcnt vmcnt(0)"); self.q = []

    def build(self):
        a = self.a
        a("s_cmp_ge_u32 s2, 256")
        a("s_cbranch_scc1 L_end")
        a("s_load_dwordx16 s[4:19], s[0:1], 0")
        if self.stamps:
            a(f"s_memrealtime s[{STAMP0}:{STAMP0+1}]"); self.nst = 1
        a(f"v_lshrrev_b32 v{vTMP}, 6, v0")
        a(f"v_and_b32 v{vLANE}, 63, v0")
        a(f"v_readfirstlane_b32 s{sW}, v{vTMP}")
        a(f"s_and_b32 s{sKVH}, s2, 7")
        a(f"s_lshr_b32 s{sB}, s2, 4")
        a(f"s_bfe_u32 s{sHALF}, s2, 0x10003")
        a(f"s_and_b32 s{sI}, s2, 15")
        a(f"s_lshl_b32 s{sT0}, s{sHALF}, 3"); a(f"s_add_u32 s{sROT}, s{sB}, s{sT0}"); a(f"s_and_b32 s{sROT}, s{sROT}, 15")
        a(f"s_lshl_b32 s{sT0}, s{sB}, 3"); a(f"s_add_u32 s{sT0}, s{sT0}, s{sKVH}"); a(f"s_lshl_b32 s{sT0}, s{sT0}, 17")
        a(f"s_lshl_b32 s{sT1}, s{sHALF}, 16"); a(f"s_add_u32 s{sOWN}, s{sT0}, s{sT1}")
        a(f"s_xor_b32 s{sPAR}, s{sOWN}, 0x10000")
        a(f"s_lshl_b32 s{sT0}, s{sKVH}, 1"); a(f"s_add_u32 s{sT0}, s{sT0}, s{sHALF}")
        a(f"s_lshl_b32 s{sWQB}, s{sT0}, 9")
        a(f"s_lshl_b32 s{sWOB}, s{sT0}, 18")
        a(f"s_lshl_b32 s{sXB}, s{sB}, 15")
        a(f"s_lshl_b32 s{sWL}, s{sW}, 10")
        a(f"s_lshr_b32 s{sG}, s{sW}, 2")
        a(f"s_mov_b32 s{sSC}, {hex(f2u(SC))}")
        a(f"v_lshrrev_b32 v16, 4, v0")
        a(f"v_and_b32 v17, 15, v0")
        a(f"v_xor_b32 v18, v16, v17"); a(f"v_and_b32 v18, 15, v18")
        a(f"v_lshlrev_b32 v19, 8, v16")
        a(f"v_lshl_add_u32 v{vOK}, v18, 4, v19")
        a(f"v_and_b32 v20, 3, v16"); a(f"v_lshlrev_b32 v20, 2, v20"); a(f"v_xor_b32 v20, v20, v17"); a(f"v_lshlrev_b32 v20, 4, v20")
        a(f"v_add_u32 v{vOV}, v19, v20")
        a(f"v_lshl_add_u32 v{vOWQ}, v16, 13, v20")
        a(f"v_lshl_add_u32 v{vOWO}, v16, 10, v20")
        a(f"s_lshl_b32 s{sT0}, s{sROT}, 2")
        a(f"v_add_u32 v{vA1}, s{sT0}, v18")
        a(f"v_lshlrev_b32 v{vA2}, 10, v16")
        a(f"v_and_b32 v16, 31, v{vLANE}"); a(f"v_lshrrev_b32 v17, 5, v{vLANE}")
        a(f"v_xor_b32 v18, v16, v17"); a(f"v_and_b32 v18, 15, v18"); a(f"v_lshlrev_b32 v18, 4, v18")
        a(f"v_lshl_add_u32 v{vB128}, v16, 8, v18")
        a(f"v_bfe_u32 v18, v{vLANE}, 2, 2")
        a(f"s_and_b32 s{sT0}, s{sW}, 3")
        a(f"v_xor_b32 v19, s{sT0}, v18"); a(f"v_lshlrev_b32 v19, 6, v19")
        a(f"v_lshl_add_u32 v19, v18, 8, v19")
        a(f"v_bfe_u32 v20, v{vLANE}, 4, 1"); a(f"v_lshl_add_u32 v19, v20, 5, v19")
        a(f"v_and_b32 v20, 3, v{vLANE}")
        a(f"v_lshl_add_u32 v{vTRV}, v20, 3, v19"); a(f"v_lshl_add_u32 v{vTRV}, v17, 10, v{vTRV}")
        a(f"v_and_b32 v21, 1, v20"); a(f"v_lshrrev_b32 v20, 1, v20"); a(f"v_lshl_add_u32 v20, v21, 1, v20")
        a(f"v_lshl_add_u32 v{vTRQ}, v20, 3, v19"); a(f"v_lshl_add_u32 v{vTRQ}, v17, 11, v{vTRQ}")
        a(f"v_lshlrev_b32 v{vLIN}, 4, v{vLANE}")
        a(f"s_lshl_b32 s{sT0}, s{sG}, 15")
        a(f"v_add_u32 v{vPB}, s{sT0}, v{vLIN}")
        a("s_waitcnt lgkmcnt(0)")
        srd(a, S_X, 4, 512 << 10); srd(a, S_WQ, 10, 4 << 20); srd(a, S_K, 6, 16 << 20); srd(a, S_V, 8, 16 << 20)
        srd(a, S_WO, 12, 4 << 20); srd(a, S_OUT, 14, 512 << 10); srd(a, S_DBG, 16, 256); srd(a, S_WS, 18, WS_BYTES)
        O = [("K", i) for i in range(8)] + [("V", i) for i in range(8)]
        P = [("K", 8 + i) for i in range(8)] + [("V", 8 + i) for i in range(8)]
        lag = 3; kv = []
        for i in range(16 + lag):
            if i < 16: kv.append(O[i])
            if i - lag >= 0: kv.append(P[i - lag])
        steps = []; pos = 0
        for j in range(16):
            ns = 2 if (j & 1) else 1
            steps.append([("WQ", 0, j), ("WQ", 1, j)] + kv[pos:pos+ns]); pos += ns
        assert pos == 24
        rest_v = kv[pos:]
        wo = []
        for st in range(2):
            for ku in range(8):
                wo += [("WO", 2*st, ku), ("WO", 2*st+1, ku)]
        X = [("X", i) for i in range(4)]
        self.stream = [X[0]] + steps[0] + X[1:] + sum(steps[1:], []) + rest_v + wo
        self.ph1 = set(sum(steps, [])); self.ph2 = set(rest_v[:6])
        ring = [L_RING + i * 8192 for i in range(NRING)]
        early = [L_SPARE, L_SPARE + 8192, L_O, L_O + 8192]
        self.free = early + ring
        a(f"s_or_b32 s{sT0}, s{sI}, s{sW}")
        a(f"s_cmp_lg_u32 s{sT0}, 0"); a("s_cbranch_scc1 L_noclr")
        a(";SKIP{")
        for r in range(4): a(f"v_mov_b32 v{24+r}, 0")
        a(f"v_lshrrev_b32 v22, 2, v{vLANE}"); a(f"v_and_b32 v23, 3, v{vLANE}"); a(f"v_lshlrev_b32 v23, 4, v23"); a(f"v_lshl_add_u32 v22, v22, 7, v23")
        a(f"s_lshl_b32 s{sT0}, s{sB}, 11"); a(f"s_add_u32 s{sT0}, s{sT0}, {FLAGS}")
        a(f"buffer_store_dwordx4 v[24:27], v22, s[{S_WS}:{S_WS+3}], s{sT0} offen sc1")
        a(";SKIP}")
        a("L_noclr:")
        self.fill()
        assert all(x in self.slot for x in X)
        self.stamp()
        for j, st in enumerate(steps):
            needs = set(st) | {("X", j >> 2)}
            self.wait_for(needs); self.barrier()
            self.fill()
            if j == 1:
                a(f"s_or_b32 s{sT0}, s{sI}, s{sW}")
                a(f"s_cmp_lg_u32 s{sT0}, 0"); a("s_cbranch_scc1 L_nordy")
                a(";SKIP{")
                a(f"v_mov_b32 v24, 1"); a(f"v_mov_b32 v25, 0")
                a(f"s_lshl_b32 s{sT0}, s{sB}, 2")
                a(f"s_mov_b64 exec, 1")
                a(f"buffer_store_dword v24, v25, s[{S_DBG}:{S_DBG+3}], s{sT0} offen offset:128 sc1")
                a(f"s_mov_b64 exec, -1")
                a("s_nop 1")
                a(";SKIP}")
                a("L_nordy:")
            self.eat_wq(j)
            for u in st[2:]:
                if u[0] == "K": self.eat_k(u[1])
                else: self.eat_v(u[1])
        for r in range(8):
            a(f"v_cvt_pk_bf16_f32 v{STG+r}, v{SREG+2*r}, v{SREG+2*r+1}")
        a(f"s_lshl_b32 s{sT0}, s{sW}, 11")
        a(f"v_add_u32 v{vA0}, s{sT0}, v{vLIN}")
        for t in range(2):
            a(f"ds_write_b128 v{vA0}, {vr(STG+4*t,4)} offset:{L_Q + t*1024}")
        self.dump_regs(STG, 8, 0)
        self.wait_for(set()); self.barrier()
        self.free = [s for s in self.free if s not in (L_SPARE, L_SPARE + 8192)]
        self.stamp()
        a(f"v_mov_b32 v{vTMP}, 0"); a(f"s_lshl_b32 s{sT0}, s{sB}, 2")
        self.vm("rdy", f"buffer_load_dword v{vRDY}, v{vTMP}, s[{S_DBG}:{S_DBG+3}], s{sT0} offen offset:128 sc1")
        order = [(ds, hd) for ds in range(8) for hd in range(2)]
        NB = 8
        def qread(n):
            ds, hd = order[n]
            a(f"ds_read_b128 {vr(STG + (n % NB)*4, 4)}, v{vLIN} offset:{L_Q + (hd*8 + ds)*1024}")
        for n in range(NB): qread(n)
        for n in range(16):
            ds, hd = order[n]
            outst = min(16, n + NB) - n - 1
            a(f"s_waitcnt lgkmcnt({outst})")
            for tl in range(2):
                d = SREG + (hd*2 + tl) * 16
                c = "0" if ds == 0 else vr(d, 16)
                a(f"v_mfma_f32_32x32x16_bf16 {vr(d,16)}, {vr(KREG + tl*32 + ds*4, 4)}, {vr(STG + (n % NB)*4, 4)}, {c}")
            if n + NB < 16: qread(n + NB)
            if n % 4 == 1: self.fill(1)
        self.dump_regs(SREG, 64, 1)
        a(f"v_and_b32 v{vA0}, 31, v{vLANE}"); a(f"v_lshlrev_b32 v{vA0}, 5, v{vA0}")
        a(f"s_lshl_b32 s{sT0}, s{sW}, 2"); a(f"v_add_u32 v{vA1}, s{sT0}, v{vA0}")
        for hd in range(2):
            b0 = SREG + hd*32; m = STG + hd
            a(f"v_max_f32 v{m}, v{b0}, v{b0+1}")
            for r in range(2, 32, 2): a(f"v_max3_f32 v{m}, v{m}, v{b0+r}, v{b0+r+1}")
        a(f"v_permlane32_swap_b32 v{STG}, v{STG+1}")
        a(f"v_max_f32 v{STG}, v{STG}, v{STG+1}")
        a(f"v_lshlrev_b32 v{vA2}, 5, v{vLANE}"); a(f"v_add_u32 v{vA2}, s{sT0}, v{vA2}")
        a(f"ds_write_b32 v{vA2}, v{STG} offset:{L_STM - 65536 + 65536}" if L_STM < 65536 else f"v_add_u32 v{vA2}, {L_STM}, v{vA2}")
        if L_STM >= 65536: a(f"ds_write_b32 v{vA2}, v{STG}")
        landed = [u for u in rest_v[:6]]
        self.wait_for(set(landed)); self.barrier()
        self.stamp()
        a(f"v_add_u32 v{vA0}, {L_STM}, v{vA0}")
        for hd in range(2):
            for i in range(2):
                a(f"ds_read_b128 {vr(STG + 4 + hd*8 + i*4, 4)}, v{vA0} offset:{hd*1024 + i*16}")
        a(f"v_mov_b32 v{vTMP}, v{vA0}")
        for u in landed: self.eat_v(u[1])
        a(f"s_waitcnt lgkmcnt({min(15, 4*len(landed))})")
        for hd in range(2):
            b0 = STG + 4 + hd*8; m = STG + hd
            a(f"v_max3_f32 v{m}, v{b0}, v{b0+1}, v{b0+2}")
            a(f"v_max3_f32 v{m}, v{m}, v{b0+3}, v{b0+4}")
            a(f"v_max3_f32 v{m}, v{m}, v{b0+5}, v{b0+6}")
            a(f"v_max_f32 v{m}, v{m}, v{b0+7}")
            a(f"v_mul_f32 v{m}, s{sSC}, v{m}")
        a(f"s_lshl_b32 s{sT0}, s{sW}, 11"); a(f"v_add_u32 v{vA1}, s{sT0}, v{vLIN}")
        PK = STG + 20
        g = 0
        for hd in range(2):
            m = STG + hd; l = STG + 2 + hd
            for tl in range(2):
                for t in range(2):
                    b0 = SREG + (hd*2 + tl)*16 + 8*t
                    for r in range(8): a(f"v_fma_f32 v{b0+r}, v{b0+r}, s{sSC}, -v{m}")
                    for r in range(8): a(f"v_exp_f32 v{b0+r}, v{b0+r}")
                    pk = PK + (g & 3) * 4; g += 1
                    for r in range(4): a(f"v_cvt_pk_bf16_f32 v{pk+r}, v{b0+2*r}, v{b0+2*r+1}")
                    a(f"ds_write_b128 v{vA1}, {vr(pk,4)} offset:{L_P + (hd*32 + tl*16 + t)*1024}")
                    for r in range(8):
                        if tl == 0 and t == 0 and r == 0: continue
                        if tl == 0 and t == 0 and r == 1: a(f"v_add_f32 v{l}, v{b0}, v{b0+1}")
                        else: a(f"v_add_f32 v{l}, v{l}, v{b0+r}")
            if hd == 0:
                self.wait_for(set()); self.barrier(); self.fill(4)
        a(f"v_permlane32_swap_b32 v{STG+2}, v{STG+3}")
        a(f"v_add_f32 v{STG+2}, v{STG+2}, v{STG+3}")
        a(f"ds_write_b32 v{vA2}, v{STG+2} offset:{L_STL - L_STM}")
        landed = rest_v[6:]
        self.wait_for(set(landed)); self.barrier()
        self.stamp()
        self.fill(3)
        for u in landed: self.eat_v(u[1])
        OACC = SREG
        a(f"s_lshl_b32 s{sT0}, s{sG}, 10"); a(f"v_add_u32 v{vTMP}, s{sT0}, v{vTMP}")
        for i in range(2):
            a(f"ds_read_b128 {vr(SREG + 16 + i*4, 4)}, v{vTMP} offset:{L_STL - L_STM + i*16}")
        porder = [(lab, t) for lab in self.vslot.keys() for t in range(2)]
        NB = 8
        def pread(n):
            lab, t = porder[n]
            a(f"ds_read_b128 {vr(STG + (n % NB)*4, 4)}, v{vPB} offset:{L_P + (lab*2 + t)*1024}")
        for n in range(NB): pread(n)
        for n in range(32):
            lab, t = porder[n]
            outst = min(32, n + NB) - n - 1
            a(f"s_waitcnt lgkmcnt({outst})")
            c = "0" if n == 0 else vr(OACC, 16)
            a(f"v_mfma_f32_32x32x16_bf16 {vr(OACC,16)}, {vr(self.vslot[lab] + 4*t, 4)}, {vr(STG + (n % NB)*4, 4)}, {c}")
            if n + NB < 32: pread(n + NB)
            if n == 2:
                b0 = SREG + 16
                a(f"v_add_f32 v{b0}, v{b0}, v{b0+1}")
                for r in range(2, 8): a(f"v_add_f32 v{b0}, v{b0}, v{b0+r}")
                a(f"v_rcp_f32 v{b0}, v{b0}")
            if n % 6 == 3: self.fill(1)
        for r in range(16): a(f"v_mul_f32 v{OACC+r}, v{OACC+r}, v{SREG+16}")
        for r in range(8): a(f"v_cvt_pk_bf16_f32 v{STG+r}, v{OACC+2*r}, v{OACC+2*r+1}")
        a(f"s_lshl_b32 s{sT0}, s{sW}, 11"); a(f"s_add_u32 s{sT0}, s{sT0}, {L_O}")
        a(f"v_add_u32 v{vA0}, s{sT0}, v{vLIN}")
        assert L_O in self.free and L_O + 8192 in self.free
        for t in range(2):
            a(f"ds_write_b128 v{vA0}, {vr(STG+4*t,4)} offset:{t*1024}")
        self.dump_regs(STG, 8, 2)
        first = [("WO", 0, 0), ("WO", 1, 0)]
        self.wait_for(set(first)); self.barrier()
        self.stamp()
        self.late = True
        self.free = [s for s in self.free if s not in (L_O, L_O + 8192)] + [L_P + i * 8192 for i in range(8)]
        self.fill()
        OF = KREG
        for ku in range(8):
            a(f"s_lshr_b32 s{sT0}, s{sB}, 2"); a(f"s_lshl_b32 s{sT0}, s{sT0}, 1"); a(f"s_add_u32 s{sT0}, s{sT0}, {ku}"); a(f"s_and_b32 s{sT0}, s{sT0}, 7")
            a(f"s_lshl_b32 s{sT0}, s{sT0}, 11"); a(f"s_add_u32 s{sT0}, s{sT0}, {L_O}")
            a(f"v_add_u32 v{vA1 + (ku & 1)}, s{sT0}, v{vLIN}")
            for t in range(2):
                a(f"ds_read_b128 {vr(OF + ku*8 + t*4, 4)}, v{vA1 + (ku & 1)} offset:{t*1024}")
        for st, (sp, sf) in enumerate(((sPA, sFA), (sPB, sFB))):
            a(f"s_add_u32 s{sT0}, s{sB}, s{sG}"); a(f"s_add_u32 s{sT0}, s{sT0}, {2*st}"); a(f"s_and_b32 s{sT0}, s{sT0}, 3")
            a(f"s_lshl_b32 s{sT0}, s{sT0}, 2"); a(f"s_and_b32 s{sT1}, s{sW}, 3"); a(f"s_add_u32 s{sT0}, s{sT0}, s{sT1}")
            a(f"s_lshl_b32 s{sT1}, s{sB}, 4"); a(f"s_add_u32 s{sT0}, s{sT0}, s{sT1}")
            a(f"s_lshl_b32 s{sp}, s{sT0}, 15"); a(f"s_lshl_b32 s{sT1}, s{sI}, 11"); a(f"s_add_u32 s{sp}, s{sp}, s{sT1}")
            if PART: a(f"s_add_u32 s{sp}, s{sp}, {PART}")
            a(f"s_lshl_b32 s{sf}, s{sT0}, 7"); a(f"s_lshl_b32 s{sT1}, s{sI}, 2"); a(f"s_add_u32 s{sf}, s{sf}, s{sT1}"); a(f"s_add_u32 s{sf}, s{sf}, {FLAGS}")
        def flag(sf, tag):
            a(f"v_mov_b32 v{vTMP}, 0")
            a("s_mov_b64 exec, 1")
            self.vm(tag, f"buffer_store_dword v{vRDY}, v{vTMP}, s[{S_WS}:{S_WS+3}], s{sf} offen sc1")
            a("s_mov_b64 exec, -1")
        for st in range(2):
            acc = SREG + 32 + st * 16
            for ku in range(8):
                u0, u1 = ("WO", 2*st, ku), ("WO", 2*st+1, ku)
                if not (st == 0 and ku == 0):
                    self.wait_for({u0, u1}); self.barrier(); self.fill()
                if st == 1 and "stA" not in self.q and not getattr(self, "flagA", False):
                    self.flagA = True; flag(sFA, "flA")
                self.sel_slot(u0, u1, vTRV, vA0)
                for t in range(2):
                    for e in range(2):
                        a(f"ds_read_b64_tr_b16 {vr(STG + 4*t + 2*e, 2)}, v{vA0} offset:{t*4096 + e*2048}")
                for t in range(2):
                    a(f"s_waitcnt lgkmcnt({2 if t == 0 else 0})")
                    c = "0" if (ku == 0 and t == 0) else vr(acc, 16)
                    a(f"v_mfma_f32_32x32x16_bf16 {vr(acc,16)}, {vr(STG+4*t,4)}, {vr(OF + ku*8 + t*4, 4)}, {c}")
                self.release(u0); self.release(u1)
            pk = STG + 16 + st * 8
            for r in range(8): a(f"v_cvt_pk_bf16_f32 v{pk+r}, v{acc+2*r}, v{acc+2*r+1}")
            if st == 0:
                assert "rdy" not in self.q
                a(f"s_mov_b32 s{sCNT}, 200000")
                a("L_rdy:")
                a(f"v_cmp_eq_u32 vcc, 1, v{vRDY}")
                a("s_cbranch_vccnz L_rdy_ok")
                a(f"v_mov_b32 v{vTMP}, 0"); a(f"s_lshl_b32 s{sT0}, s{sB}, 2")
                a(f"buffer_load_dword v{vRDY}, v{vTMP}, s[{S_DBG}:{S_DBG+3}], s{sT0} offen offset:128 sc1")
                a("s_waitcnt vmcnt(0)")
                a(f"s_sub_u32 s{sCNT}, s{sCNT}, 1"); a(f"s_cmp_lg_u32 s{sCNT}, 0"); a("s_cbranch_scc1 L_rdy")
                a("L_rdy_ok:")
                a(f"v_mov_b32 v{vRDY}, 1")
            sp = sPA if st == 0 else sPB
            for s in range(2):
                self.vm("stA" if st == 0 else "stB", f"buffer_store_dwordx4 {vr(pk+4*s,4)}, v{vLIN}, s[{S_WS}:{S_WS+3}], s{sp} offen offset:{s*1024} sc1")
        self.stamp()
        if not getattr(self, "flagA", False):
            self.wait_for({"stA"}, lgkm0=False); flag(sFA, "flA")
        self.wait_for({"stB"}, lgkm0=False); flag(sFB, "flB")
        self.stamp()
        a(f"v_and_b32 v{vA0}, 15, v{vLANE}"); a(f"v_lshlrev_b32 v{vA1}, 2, v{vA0}")
        a(f"s_lshl_b32 s{sT0}, s2, 7"); a(f"s_add_u32 s{sT0}, s{sT0}, {FLAGS}")
        a(f"v_lshrrev_b32 v{vA2}, 4, v{vLANE}")
        a(f"v_lshlrev_b32 v{vTMP}, 11, v{vA2}"); a(f"v_lshl_add_u32 v{vTMP}, v{vA0}, 4, v{vTMP}")
        a(f"s_lshl_b32 s{sT1}, s2, 15"); a(f"s_lshl_b32 s{sT2}, s{sW}, 8"); a(f"s_add_u32 s{sT1}, s{sT1}, s{sT2}")
        if PART: a(f"s_add_u32 s{sT1}, s{sT1}, {PART}")
        a(f"s_cmp_lg_u32 s{sW}, 0"); a("s_cbranch_scc1 L_polled")
        a(f"s_mov_b32 s{sCNT}, 200000")
        a("L_poll:")
        a(f"buffer_load_dword v{STG}, v{vA1}, s[{S_WS}:{S_WS+3}], s{sT0} offen sc1")
        a("s_waitcnt vmcnt(0)")
        a(f"v_cmp_ne_u32 vcc, 1, v{STG}")
        a("s_cbranch_vccz L_polled")
        a(f"s_sub_u32 s{sCNT}, s{sCNT}, 1"); a(f"s_cmp_lg_u32 s{sCNT}, 0"); a("s_cbranch_scc1 L_poll")
        a("L_polled:")
        a("s_barrier")
        self.stamp()
        for i in range(4):
            a(f"buffer_load_dwordx4 {vr(STG + 4*i, 4)}, v{vTMP}, s[{S_WS}:{S_WS+3}], s{sT1} offen sc1")
            if i < 3: a(f"s_add_u32 s{sT1}, s{sT1}, 8192")
        a(f"v_lshlrev_b32 v{vA0}, 10, v{vA0}")
        a(f"v_lshrrev_b32 v{vA1}, 1, v{vA2}"); a(f"v_lshl_add_u32 v{vA0}, v{vA1}, 4, v{vA0}")
        a(f"v_and_b32 v{vA1}, 1, v{vA2}"); a(f"v_lshl_add_u32 v{vA0}, v{vA1}, 2, v{vA0}")
        a(f"s_lshl_b32 s{sT0}, s{sB}, 15"); a(f"s_and_b32 s{sT2}, s{sW}, 1"); a(f"s_lshl_b32 s{sT2}, s{sT2}, 14"); a(f"s_add_u32 s{sT0}, s{sT0}, s{sT2}")
        a(f"s_lshl_b32 s{sT2}, s{sI}, 6"); a(f"s_add_u32 s{sT0}, s{sT0}, s{sT2}")
        a(f"s_lshl_b32 s{sT2}, s{sG}, 5"); a(f"s_add_u32 s{sT0}, s{sT0}, s{sT2}")
        a(f"s_bfe_u32 s{sT2}, s{sW}, 0x10001"); a(f"s_lshl_b32 s{sT2}, s{sT2}, 3"); a(f"s_add_u32 s{sT0}, s{sT0}, s{sT2}")
        AC = SREG
        a(f"s_mov_b32 s{sT3}, 0xffff0000")
        for i in range(4):
            a(f"s_waitcnt vmcnt({3-i})")
            for j in range(4):
                src = STG + 4*i + j
                if i == 0:
                    a(f"v_lshlrev_b32 v{AC+2*j}, 16, v{src}"); a(f"v_and_b32 v{AC+2*j+1}, s{sT3}, v{src}")
                else:
                    a(f"v_lshlrev_b32 v{AC+8}, 16, v{src}"); a(f"v_and_b32 v{AC+9}, s{sT3}, v{src}")
                    a(f"v_add_f32 v{AC+2*j}, v{AC+2*j}, v{AC+8}"); a(f"v_add_f32 v{AC+2*j+1}, v{AC+2*j+1}, v{AC+9}")
        for k in range(4): a(f"v_permlane32_swap_b32 v{AC+k}, v{AC+k+4}")
        for k in range(4): a(f"v_add_f32 v{AC+k}, v{AC+k}, v{AC+k+4}")
        for k in range(2): a(f"v_permlane16_swap_b32 v{AC+k}, v{AC+k+2}")
        for k in range(2): a(f"v_add_f32 v{AC+k}, v{AC+k}, v{AC+k+2}")
        a(f"v_cvt_pk_bf16_f32 v{AC}, v{AC}, v{AC+1}")
        a(f"buffer_store_dword v{AC}, v{vA0}, s[{S_OUT}:{S_OUT+3}], s{sT0} offen")
        if self.stamps:
            a("s_waitcnt vmcnt(0)"); self.stamp()
            ns = self.nst
            a(f"s_lshl_b32 s{sT0}, s2, 3"); a(f"s_add_u32 s{sT0}, s{sT0}, s{sW}"); a(f"s_mul_i32 s{sT0}, s{sT0}, {ns*8}"); a(f"s_add_u32 s{sT0}, s{sT0}, {hex(STAMP_OFF)}")
            a(f"v_mov_b32 v{vTMP}, 0"); a("s_mov_b64 exec, 1")
            for i in range(ns):
                a(f"v_mov_b32 v16, s{STAMP0+2*i}"); a(f"v_mov_b32 v17, s{STAMP0+2*i+1}")
                a(f"buffer_store_dwordx2 v[16:17], v{vTMP}, s[{S_WS}:{S_WS+3}], s{sT0} offen offset:{8*i}"); a("s_nop 1")
            if self.dbgstamps:
                a(f"s_cmp_lg_u32 s{sW}, 0"); a("s_cbranch_scc1 L_end")
                a(f"s_not_b32 s{sT0}, s{STAMP0}")
                a(f"v_mov_b32 v16, s{sT0}")
                a(f"buffer_atomic_umax v16, v{vTMP}, s[{S_DBG}:{S_DBG+3}], 0 offen offset:60"); a("s_nop 1")
                for i in range(ns):
                    a(f"v_mov_b32 v16, s{STAMP0+2*i}")
                    a(f"buffer_atomic_umax v16, v{vTMP}, s[{S_DBG}:{S_DBG+3}], 0 offen offset:{4*i}"); a("s_nop 1")
        a("L_end:")
        assert self.nxt == len(self.stream)
        lines, added = hz.fix(self.a.lines)
        return "\n".join(lines) + "\n", added

HEADER = open("standalone__gqa_block_cached__near_ridge.s.ref").read().split("; Override")[0]
def make(fn, **kw):
    g = Gen(**kw); body, added = g.build()
    code, desc = kernel_text(NAME, body, vgpr=256, sgpr=102, accum=256)
    desc = desc.replace("  .amdhsa_kernarg_size", "  .amdhsa_float_denorm_mode_32 3\n  .amdhsa_kernarg_size")
    t = file_text([f"grid=(256,1,1) block=(512,1,1) lds={LDS_BYTES}"], [(code, desc)], comments=HEADER)
    open(fn, "w").write(t)
    print(fn, "nops added", added, "stamps", g.nst, "lines", len(body.splitlines()))
if __name__ == "__main__":
    make("k_plain.s"); make("k_stamp.s", stamps=True); make("k_dump.s", dump=True); make("k_dbg.s", stamps=True, dbgstamps=True)
```
